```python
import torch

def _softmax(x, axis=-1):
    return torch.softmax(x, dim=axis)
def _gelu(x):
    return torch.nn.functional.gelu(x, approximate="tanh")
def _silu(x):
    return torch.nn.functional.silu(x)
def _sigmoid(x):
    return torch.sigmoid(x)
def _layernorm(x, axis=-1, eps=1e-5):
    m = x.mean(dim=axis, keepdim=True)
    v = x.var(dim=axis, keepdim=True, unbiased=False)
    return (x - m) / torch.sqrt(v + eps)
def _scatter_add(tgt, idx, src, axis=0):
    return tgt.clone().index_add_(axis, idx, src)
def _segment_sum(src, seg, n):
    out = torch.zeros((n,) + src.shape[1:], dtype=src.dtype)
    return out.index_add_(0, seg, src)
def _pad(x, pw):
    flat = tuple(v for pair in reversed(pw) for v in pair)
    return torch.nn.functional.pad(x, flat)

kernel_name = 'recurrent_scan__mha_block__moe_arch_mod__prompt'

def setup_inputs():

    _w = (lambda a: (lambda t: t.to(torch.bfloat16) if t.is_floating_point() else t)(torch.as_tensor(a)))
    def _A_setup():
        B, S, D, H = 1, 2048, 448, 16
        return {
            "x": _w((lambda *s: torch.randn(*s, dtype=torch.bfloat16) * 0.05)(B, S, D)),
            "wqkv": _w((lambda *s: torch.randn(*s, dtype=torch.bfloat16) * 0.05)(D, 3 * D)),
            "wo": _w((lambda *s: torch.randn(*s, dtype=torch.bfloat16) * 0.05)(D, D)),
        }
    _A_in = _A_setup()

    def _B_setup():
        B, S, D, F, C = 1, 2048, 448, 1792, 1
        return {
            "x": _w((lambda *s: torch.randn(*s, dtype=torch.bfloat16) * 0.05)(B, S, D)),
            "w_r": _w((lambda *s: torch.randn(*s, dtype=torch.bfloat16) * 0.05)(D)),
            "w_gate": _w((lambda *s: torch.randn(*s, dtype=torch.bfloat16) * 0.05)(D, F)),
            "w_up": _w((lambda *s: torch.randn(*s, dtype=torch.bfloat16) * 0.05)(D, F)),
            "w_down": _w((lambda *s: torch.randn(*s, dtype=torch.bfloat16) * 0.05)(F, D)),
        }
    _B_in = _B_setup()

    return {
        "A_x": _A_in["x"],
        "A_wqkv": _A_in["wqkv"],
        "A_wo": _A_in["wo"],
        "B_x": _B_in["x"],
        "B_w_r": _B_in["w_r"],
        "B_w_gate": _B_in["w_gate"],
        "B_w_up": _B_in["w_up"],
        "B_w_down": _B_in["w_down"],
    }

def reference(A_x, A_wqkv, A_wo, B_x, B_w_r, B_w_gate, B_w_up, B_w_down):
    def _A_ref(x, wqkv, wo):
        B, S, D = x.shape
        H = 16
        Dh = D // H
        qkv = (lambda x, *d: x.permute(*d))((x @ wqkv).reshape(B, S, 3, H, Dh), 2, 0, 3, 1, 4)
        q, k, v = qkv[0], qkv[1], qkv[2]
        scores = torch.einsum("bhqd,bhkd->bhqk", q, k) * (Dh ** -0.5)
        p = _softmax(scores, axis=-1)
        o = torch.einsum("bhqk,bhkd->bhqd", p, v)
        return (lambda x, *d: x.permute(*d))(o, 0, 2, 1, 3).reshape(B, S, D) @ wo

    def _B_ref(x, w_r, w_gate, w_up, w_down):
        B, S, D = x.shape
        C = 1
        r = x @ w_r
        idx = torch.argsort(-r, axis=-1)[:, :C]
        idx_e = (lambda x, n, axis: torch.repeat_interleave(x, n, dim=axis))(idx.reshape(B, C, 1), D, axis=2)
        x_sel = (lambda x, i, axis: torch.take_along_dim(x, i, dim=axis))(x, idx_e, axis=1)
        g = _silu(x_sel @ w_gate)
        u = x_sel @ w_up
        y = (g * u) @ w_down
        r_sel = _sigmoid((lambda x, i, axis: torch.take_along_dim(x, i, dim=axis))(r, idx, axis=1))
        y = y * r_sel.reshape(B, C, 1)
        b_off = (torch.arange(B) * S).reshape(B, 1)
        flat_idx = (idx + b_off).reshape(B * C)
        zero = (x * 0.0).reshape(B * S, D)
        upd = _scatter_add(zero, flat_idx, y.reshape(B * C, D), axis=0)
        return x + upd.reshape(B, S, D)

    x = A_x
    xn = _layernorm(x, axis=-1)
    s = _A_ref(xn, A_wqkv, A_wo)
    g = _silu(_B_ref(xn, B_w_r, B_w_gate, B_w_up, B_w_down))
    return x + s * g
```

```python
import struct
S, D, H, DH, F = 2048, 448, 16, 28, 1792
NT = S // 32
KS1 = D // 16
def al(x, a=4096): return (x + a - 1) // a * a
WS = {}
_o = 0
def _add(name, nbytes):
    global _o
    WS[name] = _o
    _o = al(_o + nbytes, 65536)
_add('XNF', NT * KS1 * 1024)
_add('XNR', S * D * 2)
_add('R',   S * 4)
_add('WF',  48 * KS1 * 1024)
_add('WOF', 14 * 32 * 1024)
_add('QF',  H * NT * 2 * 1024)
_add('KF',  H * NT * 2 * 1024)
_add('VF',  H * NT * 2 * 1024)
_add('OF',  NT * 32 * 1024)
NFW = 56
_add('YP',  NFW * D * 4)
_add('UPD', D * 4 + 64)
WS_END = _o

def f2u(x): return struct.unpack('<I', struct.pack('<f', x))[0]
def hexf(x): return '0x%08x' % f2u(x)

class Asm:
    def __init__(self): self.L = []
    def __call__(self, t): self.L.append('  ' + t)
    def lab(self, t): self.L.append(t + ':')
    def raw(self, t): self.L.append(t)
    def text(self): return '\n'.join(self.L) + '\n'

def vr(a, n): return f'v[{a}:{a+n-1}]'
def sr(a, n): return f's[{a}:{a+n-1}]'

def s_base(a, sd, sbase, off):
    a(f's_add_u32 s{sd}, s{sbase}, {off}')
    a(f's_addc_u32 s{sd+1}, s{sbase+1}, 0')

def wave_sum_to_sgpr(a, v, s):
    for mode in ('row_shr:1 row_mask:0xf', 'row_shr:2 row_mask:0xf', 'row_shr:4 row_mask:0xf',
                 'row_shr:8 row_mask:0xf', 'row_bcast:15 row_mask:0xa', 'row_bcast:31 row_mask:0xc'):
        a('s_nop 1')
        a(f'v_add_f32_dpp v{v}, v{v}, v{v} {mode} bank_mask:0xf bound_ctrl:0')
    a('s_nop 1')
    a(f'v_readlane_b32 s{s}, v{v}, 63')

def kernel_head(a, name):
    a.raw(f'.globl {name}')
    a.raw('.p2align 8')
    a.raw(f'.type {name},@function')
    a.lab(name)

def kernel_desc(name, vgpr, sgpr, lds_static=0):
    acc = (vgpr + 3) // 4 * 4
    return f'''.amdhsa_kernel {name}
  .amdhsa_next_free_vgpr {vgpr}
  .amdhsa_next_free_sgpr {sgpr}
  .amdhsa_accum_offset {acc}
  .amdhsa_group_segment_fixed_size 0
  .amdhsa_kernarg_size 88
  .amdhsa_user_sgpr_count 2
  .amdhsa_user_sgpr_kernarg_segment_ptr 1
  .amdhsa_system_sgpr_workgroup_id_x 1
.end_amdhsa_kernel
'''
```

```python
from common import *
NAME = 'recurrent_scan__mha_block__moe_arch_mod__prompt_kernel'
NWG = 960
VGPR, SGPR = 64, 64

def bf16_round(a, vdst, vsrc, vtmp):
    a(f'v_cvt_pk_bf16_f32 v{vtmp}, v{vsrc}, v{vsrc}')
    a(f'v_lshlrev_b32 v{vdst}, 16, v{vtmp}')

def gen(a):
    kernel_head(a, NAME)
    a(f's_cmp_ge_u32 s2, {NWG}')
    a('s_cbranch_scc1 K0_end')
    a('s_load_dwordx2 s[4:5], s[0:1], 0')
    a('s_load_dwordx2 s[6:7], s[0:1], 8')
    a('s_load_dwordx2 s[8:9], s[0:1], 16')
    a('s_load_dwordx2 s[10:11], s[0:1], 32')
    a('s_load_dwordx2 s[12:13], s[0:1], 80')
    a('v_lshrrev_b32 v1, 6, v0')
    a('v_and_b32 v2, 63, v0')
    a('s_nop 1')
    a('v_readfirstlane_b32 s14, v1')
    a('s_lshl_b32 s15, s2, 2')
    a('s_add_u32 s15, s15, s14')
    a('v_and_b32 v40, 31, v2')
    a('v_lshrrev_b32 v41, 5, v2')
    a('v_lshlrev_b32 v42, 4, v2')
    a('s_waitcnt lgkmcnt(0)')
    a('s_cmp_lt_u32 s15, 2048')
    a('s_cbranch_scc1 K0_ln')
    a('s_cmp_lt_u32 s15, 3392')
    a('s_cbranch_scc1 K0_wf')
    a('s_branch K0_wof')

    a.lab('K0_ln')
    a('s_mul_i32 s16, s15, 896')
    a('v_add_u32 v3, s16, v42')
    for r in range(4, 12):
        a(f'v_mov_b32 v{r}, 0')
    a('v_mov_b32 v20, 0')
    a('v_mov_b32 v22, 0')
    a('v_mov_b32 v23, 0')
    a('s_mov_b32 exec_lo, -1')
    a('s_mov_b32 exec_hi, 0x00ffffff')
    a('global_load_dwordx4 v[4:7], v3, s[4:5]')
    a('global_load_dwordx4 v[8:11], v42, s[10:11]')
    a('s_waitcnt vmcnt(1)')
    for i in range(4):
        a(f'v_lshlrev_b32 v{12+2*i}, 16, v{4+i}')
        a(f'v_and_b32 v{13+2*i}, 0xffff0000, v{4+i}')
    a('v_add_f32 v20, v12, v13')
    a('v_add_f32 v21, v14, v15')
    a('v_add_f32 v24, v16, v17')
    a('v_add_f32 v25, v18, v19')
    a('v_add_f32 v20, v20, v21')
    a('v_add_f32 v24, v24, v25')
    a('v_add_f32 v20, v20, v24')
    a('s_mov_b64 exec, -1')
    wave_sum_to_sgpr(a, 20, 17)
    a(f'v_mov_b32 v26, {hexf(1.0/448)}')
    a('s_nop 0')
    a('v_mul_f32 v27, s17, v26')
    a('s_mov_b32 exec_hi, 0x00ffffff')
    for i in range(8):
        a(f'v_sub_f32 v24, v{12+i}, v27')
        a('v_fmac_f32 v22, v24, v24')
    a('s_mov_b64 exec, -1')
    wave_sum_to_sgpr(a, 22, 18)
    a('s_nop 0')
    a('v_mul_f32 v28, s18, v26')
    bf16_round(a, 28, 28, 24)
    a(f'v_add_f32 v28, {hexf(1e-5)}, v28')
    bf16_round(a, 28, 28, 24)
    a('v_sqrt_f32 v28, v28')
    a('s_nop 0')
    bf16_round(a, 28, 28, 24)
    bf16_round(a, 27, 27, 24)
    a('v_rcp_f32 v29, v28')
    a('s_nop 0')
    for i in range(4):
        a(f'v_sub_f32 v24, v{12+2*i}, v27')
        a(f'v_sub_f32 v25, v{13+2*i}, v27')
        a('v_cvt_pk_bf16_f32 v30, v24, v25')
        a('v_lshlrev_b32 v24, 16, v30')
        a('v_and_b32 v25, 0xffff0000, v30')
        a('v_mul_f32 v31, v24, v29')
        a('v_mul_f32 v32, v25, v29')
        a('v_fma_f32 v33, -v31, v28, v24')
        a('v_fma_f32 v34, -v32, v28, v25')
        a('v_fma_f32 v31, v33, v29, v31')
        a('v_fma_f32 v32, v34, v29, v32')
        a(f'v_cvt_pk_bf16_f32 v{44+i}, v31, v32')
    a('s_waitcnt vmcnt(0)')
    a('s_mov_b32 exec_hi, 0x00ffffff')
    for i in range(4):
        a(f'v_lshlrev_b32 v24, 16, v{44+i}')
        a(f'v_and_b32 v25, 0xffff0000, v{44+i}')
        a(f'v_lshlrev_b32 v31, 16, v{8+i}')
        a(f'v_and_b32 v32, 0xffff0000, v{8+i}')
        a('v_fmac_f32 v23, v24, v31')
        a('v_fmac_f32 v23, v25, v32')
    s_base(a, 20, 12, WS['XNR'])
    a('global_store_dwordx4 v3, v[44:47], s[20:21]')
    a('s_lshr_b32 s22, s15, 5')
    a('s_mul_i32 s22, s22, 28672')
    a('s_and_b32 s23, s15, 31')
    a('s_lshl_b32 s23, s23, 4')
    a('s_add_u32 s22, s22, s23')
    a('v_lshrrev_b32 v24, 1, v2')
    a('v_lshlrev_b32 v24, 10, v24')
    a('v_and_b32 v25, 1, v2')
    a('v_lshlrev_b32 v25, 9, v25')
    a('v_add3_u32 v24, v24, v25, s22')
    s_base(a, 20, 12, WS['XNF'])
    a('global_store_dwordx4 v24, v[44:47], s[20:21]')
    a('s_mov_b64 exec, -1')
    wave_sum_to_sgpr(a, 23, 19)
    a('s_lshl_b32 s22, s15, 2')
    a('v_mov_b32 v24, s19')
    a('v_mov_b32 v25, s22')
    s_base(a, 20, 12, WS['R'])
    a('s_mov_b64 exec, 1')
    a('global_store_dword v25, v24, s[20:21]')
    a('s_branch K0_end')

    a.lab('K0_wf')
    a('s_sub_u32 s16, s15, 2048')
    a('s_mov_b32 s17, 153391690')
    a('s_mul_hi_u32 s17, s16, s17')
    a('s_mul_i32 s18, s17, 28')
    a('s_sub_u32 s18, s16, s18')
    a('s_lshr_b32 s19, s17, 4')
    a('s_and_b32 s20, s17, 15')
    a('s_mul_i32 s19, s19, 448')
    a('s_mul_i32 s20, s20, 28')
    a('s_add_u32 s19, s19, s20')
    a('s_lshl_b32 s19, s19, 1')
    a('s_mul_i32 s20, s18, 43008')
    a('s_add_u32 s19, s19, s20')
    a('v_mul_u32_u24 v3, 21504, v41')
    a('v_lshl_add_u32 v3, v40, 1, v3')
    for e in range(8):
        s_base(a, 24 + 2*e, 6, 's19')
        if e < 7: a('s_add_u32 s19, s19, 2688')
    for e in range(8):
        a(f'v_mov_b32 v{4+e}, 0')
    a('v_cmp_gt_u32 vcc, 28, v40')
    a('s_and_saveexec_b64 s[22:23], vcc')
    for e in range(8):
        a(f'global_load_ushort v{4+e}, v3, s[{24+2*e}:{25+2*e}]')
    a('s_mov_b64 exec, s[22:23]')
    a('s_lshl_b32 s16, s16, 10')
    a(f's_add_u32 s16, s16, {WS["WF"]}')
    s_base(a, 20, 12, 's16')
    a('s_waitcnt vmcnt(0)')
    for i in range(4):
        a(f'v_lshl_or_b32 v{12+i}, v{5+2*i}, 16, v{4+2*i}')
    a('global_store_dwordx4 v42, v[12:15], s[20:21]')
    a('s_branch K0_end')

    a.lab('K0_wof')
    a('s_sub_u32 s16, s15, 3392')
    a('s_lshr_b32 s17, s16, 5')
    a('s_and_b32 s18, s16, 31')
    a('s_lshr_b32 s19, s18, 1')
    a('s_and_b32 s20, s18, 1')
    a('s_mul_i32 s19, s19, 25088')
    a('s_lshl_b32 s17, s17, 6')
    a('s_add_u32 s19, s19, s17')
    a('v_mul_u32_u24 v3, 3584, v41')
    a('v_lshl_add_u32 v3, v40, 1, v3')
    a('v_lshlrev_b32 v5, 2, v41')
    a('s_mul_i32 s21, s20, 16')
    for e in range(8):
        a(f'v_mov_b32 v{12+e}, 0')
    for e in range(8):
        a(f's_add_u32 s22, s21, {(e>>2)*8 + (e&3)}')
        a('s_mul_i32 s23, s22, 896')
        a('s_add_u32 s23, s23, s19')
        s_base(a, 24, 8, 's23')
        a('s_sub_u32 s22, 28, s22')
        a('v_cmp_gt_u32 vcc, s22, v5')
        a('s_and_saveexec_b64 s[26:27], vcc')
        a(f'global_load_ushort v{12+e}, v3, s[24:25]')
        a('s_mov_b64 exec, s[26:27]')
    a('s_lshl_b32 s16, s16, 10')
    a(f's_add_u32 s16, s16, {WS["WOF"]}')
    s_base(a, 20, 12, 's16')
    a('s_waitcnt vmcnt(0)')
    for i in range(4):
        a(f'v_lshl_or_b32 v{4+i+20}, v{13+2*i}, 16, v{12+2*i}')
    a('global_store_dwordx4 v42, v[24:27], s[20:21]')
    a.lab('K0_end')
    a('s_endpgm')
```

```python
import sys, importlib
sys.path.insert(0, 'gen')
from common import *
import k0
mods = [('k0', k0)]
for name in ('k1', 'k2', 'k3'):
    try:
        mods.append((name, importlib.import_module(name)))
    except ImportError:
        pass
only = sys.argv[2].split(',') if len(sys.argv) > 2 else None
HEADER = open('recurrent_scan__mha_block__moe_arch_mod__prompt.s.ref').read().split('; Override')[0]
a = Asm()
out = HEADER
for n, m in mods:
    if only and n not in only: continue
    out += f'; @launch kernel={m.NAME} grid=({m.NWG},1,1) block=({getattr(m,"BLOCK",256)},1,1) lds={getattr(m,"LDS",0)}\n'
out += '.amdgcn_target "amdgcn-amd-amdhsa--gfx950"\n.text\n'
for n, m in mods:
    m.gen(a)
out += a.text()
out += '.section .rodata,"a"\n.p2align 6\n'
for n, m in mods:
    out += kernel_desc(m.NAME, m.VGPR, m.SGPR)
open(sys.argv[1], 'w').write(out)
print('wrote', sys.argv[1], len(out), 'bytes; ws end', hex(WS_END))
```
